```python
import torch

def _softmax(x, axis=-1):
    return torch.softmax(x, dim=axis)
def _gelu(x):
    return torch.nn.functional.gelu(x, approximate="tanh")
def _silu(x):
    return torch.nn.functional.silu(x)
def _sigmoid(x):
    return torch.sigmoid(x)
def _layernorm(x, axis=-1, eps=1e-5):
    m = x.mean(dim=axis, keepdim=True)
    v = x.var(dim=axis, keepdim=True, unbiased=False)
    return (x - m) / torch.sqrt(v + eps)
def _scatter_add(tgt, idx, src, axis=0):
    return tgt.clone().index_add_(axis, idx, src)
def _segment_sum(src, seg, n):
    out = torch.zeros((n,) + src.shape[1:], dtype=src.dtype)
    return out.index_add_(0, seg, src)
def _pad(x, pw):
    flat = tuple(v for pair in reversed(pw) for v in pair)
    return torch.nn.functional.pad(x, flat)

kernel_name = 'gated_mix__mha_block_cached__geglu_ffn__decode'

def setup_inputs():

    _w = (lambda a: (lambda t: t.to(torch.bfloat16) if t.is_floating_point() else t)(torch.as_tensor(a)))
    def _A_setup():
        B, Sq, D = 4, 1, 512
        H, Sk, Dh = 32, 4096, 128
        return {
            "x": _w((lambda *s: torch.randn(*s, dtype=torch.bfloat16) * 0.05)(B, Sq, D)),
            "k_cache": _w((lambda *s: torch.randn(*s, dtype=torch.bfloat16) * 6.4)(B, H, Sk, Dh)),
            "v_cache": _w((lambda *s: torch.randn(*s, dtype=torch.bfloat16) * 0.2)(B, H, Sk, Dh)),
            "wq": _w((lambda *s: torch.randn(*s, dtype=torch.bfloat16) * 6.4)(D, H * Dh) * (D ** -0.5)),
            "wo": _w((lambda *s: torch.randn(*s, dtype=torch.bfloat16) * 0.2)(H * Dh, D) * ((H * Dh) ** -0.5)),
        }
    _A_in = _A_setup()

    def _B_setup():
        B, S, D, F = 4, 1, 512, 1792
        return {
            "x": _w((lambda *s: torch.randn(*s, dtype=torch.bfloat16) * 0.05)(B, S, D)),
            "w_gate": _w((lambda *s: torch.randn(*s, dtype=torch.bfloat16) * 0.05)(D, F)),
            "w_up": _w((lambda *s: torch.randn(*s, dtype=torch.bfloat16) * 0.05)(D, F)),
            "w_down": _w((lambda *s: torch.randn(*s, dtype=torch.bfloat16) * 0.05)(F, D)),
        }
    _B_in = _B_setup()

    return {
        "A_x": _A_in["x"],
        "A_k_cache": _A_in["k_cache"],
        "A_v_cache": _A_in["v_cache"],
        "A_wq": _A_in["wq"],
        "A_wo": _A_in["wo"],
        "B_x": _B_in["x"],
        "B_w_gate": _B_in["w_gate"],
        "B_w_up": _B_in["w_up"],
        "B_w_down": _B_in["w_down"],
        "gate_w": _w((lambda *s: torch.randn(*s, dtype=torch.bfloat16) * 0.05)(512) * 16.0),
    }

def reference(A_x, A_k_cache, A_v_cache, A_wq, A_wo, B_x, B_w_gate, B_w_up, B_w_down, gate_w):
    def _A_ref(x, k_cache, v_cache, wq, wo):
        B, Sq, D = x.shape
        H, Dh = 32, 128
        q = (lambda x, *d: x.permute(*d))((x @ wq).reshape(B, Sq, H, Dh), 0, 2, 1, 3)
        scores = torch.einsum("bhqd,bhkd->bhqk", q, k_cache) * (Dh ** -0.5)
        p = _softmax(scores, axis=-1)
        o = torch.einsum("bhqk,bhkd->bhqd", p, v_cache)
        return (lambda x, *d: x.permute(*d))(o, 0, 2, 1, 3).reshape(B, Sq, H * Dh) @ wo

    def _B_ref(x, w_gate, w_up, w_down):
        return (_gelu(x @ w_gate) * (x @ w_up)) @ w_down

    x = A_x
    g = _sigmoid((x * gate_w).sum(-1, keepdims=True))
    a = _A_ref(x, A_k_cache, A_v_cache, A_wq, A_wo)
    b = _B_ref(x, B_w_gate, B_w_up, B_w_down)
    return g * a + (1 - g) * b
```

```python
import re

REG_RE = re.compile(r'(?<![\w.])([vs])(\d+)(?![\w\[])|(?<![\w.])([vs])\[(\d+):(\d+)\]|(?<![\w.])(vcc|exec|m0)(?:_lo|_hi)?(?![\w])')

def regs_of(tok):
    out = []
    for m in REG_RE.finditer(tok):
        if m.group(1):
            out.append((m.group(1), int(m.group(2))))
        elif m.group(3):
            out += [(m.group(3), i) for i in range(int(m.group(4)), int(m.group(5)) + 1)]
        else:
            out.append((m.group(6), 0))
    return out

TRANS = ("v_exp_f32", "v_log_f32", "v_rcp_f32", "v_rsq_f32", "v_sqrt_f32", "v_sin_f32", "v_cos_f32")
NO_DST_S = ("s_cmp", "s_waitcnt", "s_branch", "s_cbranch", "s_barrier", "s_nop", "s_setprio", "s_sleep", "s_endpgm", "s_bitcmp")

class Ins:
    __slots__ = ("text", "op", "kind", "wr", "rd", "dpp", "mf_a", "mf_b", "mf_c", "states", "store_data")
    def __init__(self, text):
        self.text = text
        t = text.split(";")[0].strip()
        self.op = t.split()[0] if t else ""
        rest = t[len(self.op):].strip()
        ops = [o.strip() for o in split_ops(rest)]
        self.wr, self.rd, self.dpp = [], [], False
        self.mf_a = self.mf_b = self.mf_c = []
        self.store_data = []
        self.states = 1
        op = self.op
        if not t or t.endswith(":") or op.startswith("."):
            self.kind = "label" if t.endswith(":") else "none"
            self.states = 0
            return
        if op == "s_nop":
            self.kind = "nop"; self.states = int(ops[0], 0) + 1; return
        if op.startswith("v_mfma"):
            self.kind = "mfma"
            self.wr = regs_of(ops[0]); self.mf_a = regs_of(ops[1]); self.mf_b = regs_of(ops[2]); self.mf_c = regs_of(ops[3])
            self.rd = self.mf_a + self.mf_b + self.mf_c
            return
        if op.startswith("v_"):
            self.kind = "trans" if op.replace("_e32", "").replace("_e64", "") in TRANS else "valu"
            self.dpp = "_dpp" in op or "quad_perm" in t or "row_" in t
            if op.startswith("v_permlane"):
                self.kind = "permlane"
                self.wr = regs_of(ops[0]) + regs_of(ops[1]); self.rd = list(self.wr); return
            if op.startswith(("v_readfirstlane", "v_readlane")):
                self.kind = "readlane"
                self.wr = regs_of(ops[0]); self.rd = [r for o in ops[1:] for r in regs_of(o)]; return
            self.wr = regs_of(ops[0]); self.rd = [r for o in ops[1:] for r in regs_of(o)]
            if op.startswith(("v_fmac", "v_mac", "v_dot2c", "v_pk_fmac")) or self.dpp:
                self.rd += self.wr
            if op.startswith("v_cndmask") and len(ops) == 3:
                self.rd.append(("vcc", 0))
            if op.startswith(("v_add_co", "v_sub_co", "v_addc_co", "v_subb_co")):
                self.wr += regs_of(ops[1])
            return
        if op.startswith(("buffer_load", "global_load")):
            self.kind = "vmem"; self.wr = regs_of(ops[0]); self.rd = [r for o in ops[1:] for r in regs_of(o)]; return
        if op.startswith("buffer_store"):
            self.kind = "vmem"; self.rd = [r for o in ops for r in regs_of(o)]; self.store_data = regs_of(ops[0]); return
        if op.startswith("global_store"):
            self.kind = "vmem"; self.rd = [r for o in ops for r in regs_of(o)]; self.store_data = regs_of(ops[1]); return
        if op.startswith(("buffer_atomic", "global_atomic")):
            self.kind = "vmem"; self.rd = [r for o in ops for r in regs_of(o)]
            if " sc0" in t: self.wr = regs_of(ops[0])
            return
        if op.startswith(("ds_read", "ds_bpermute", "ds_permute", "ds_swizzle")):
            self.kind = "ds"; self.wr = regs_of(ops[0]); self.rd = [r for o in ops[1:] for r in regs_of(o)]; return
        if op.startswith("ds_"):
            self.kind = "ds"; self.rd = [r for o in ops for r in regs_of(o)]; return
        if op.startswith("s_"):
            self.kind = "salu"
            if op.startswith(NO_DST_S):
                self.rd = [r for o in ops for r in regs_of(o)]
                if op.startswith(("s_branch", "s_cbranch", "s_endpgm")): self.kind = "branch"
                if op == "s_cbranch_vccz" or op == "s_cbranch_vccnz": self.rd.append(("vcc", 0))
            elif op.startswith(("s_load", "s_memrealtime", "s_memtime", "s_getreg")):
                self.kind = "smem"; self.wr = regs_of(ops[0]); self.rd = [r for o in ops[1:] for r in regs_of(o)]
            else:
                self.wr = regs_of(ops[0]); self.rd = [r for o in ops[1:] for r in regs_of(o)]
                if op.startswith(("s_and_saveexec", "s_or_saveexec")): self.wr.append(("exec", 0))
            return
        raise ValueError("cannot parse: " + text)

def split_ops(rest):
    out, depth, cur = [], 0, ""
    for ch in rest:
        if ch == "[": depth += 1
        if ch == "]": depth -= 1
        if ch == "," and depth == 0:
            out.append(cur); cur = ""
        else:
            cur += ch
    if cur.strip(): out.append(cur)
    return out

VALU_KINDS = ("valu", "trans", "permlane", "readlane")
MFMA_PASS = 4

def need(prod, cons):
    n = 0
    pw, cr, cw = set(prod.wr), set(cons.rd), set(cons.wr)
    if prod.kind in VALU_KINDS:
        vw = {r for r in pw if r[0] == "v"}
        sw = {r for r in pw if r[0] != "v"}
        if vw & cr:
            if cons.kind == "mfma": n = max(n, 2)
            if cons.dpp: n = max(n, 2)
            if cons.kind == "permlane": n = max(n, 2)
            if cons.kind == "readlane": n = max(n, 1)
            if prod.kind == "trans" and cons.kind in VALU_KINDS + ("mfma",) and cons.kind != "trans": n = max(n, 1)
            if prod.kind == "trans" and cons.kind == "trans": n = max(n, 1)
        if sw & cr:
            if cons.kind in VALU_KINDS or cons.kind == "mfma": n = max(n, 2)
            if cons.kind == "readlane": n = max(n, 4)
            if cons.kind == "vmem": n = max(n, 5)
            if cons.kind in ("salu", "branch", "smem"): n = max(n, 4 if cons.kind == "smem" else 1)
            if cons.kind == "ds": n = max(n, 2)
        if ("exec", 0) in sw and cons.kind in VALU_KINDS + ("mfma", "vmem", "ds"): n = max(n, 5)
    if prod.kind == "mfma":
        d = pw
        if cons.kind == "mfma":
            if d & (set(cons.mf_a) | set(cons.mf_b)): n = max(n, 8)
            c = set(cons.mf_c)
            if d & c and c != d: n = max(n, 6)
            if d & cw and cw != d: n = max(n, 8)
            if d & cw and cw == d and c != d: n = max(n, 8)
        else:
            if d & (cr | cw): n = max(n, 8)
        if set(prod.mf_c) & cw and cons.kind in VALU_KINDS: n = max(n, 3)
    if prod.store_data and cons.kind in VALU_KINDS + ("mfma", "vmem", "ds"):
        if len(prod.store_data) >= 3 and set(prod.store_data) & cw: n = max(n, 2)
    return n

MAXD = 10

class Prog:
    def __init__(self):
        self.ins = []
        self.vm = []
        self.vm_next = 0
        self.lg = []
        self.lg_next = 0
        self.nops_inserted = 0
        self.pend = {}
        self.check_pending = True
    def raw(self, text):
        self.ins.append(Ins(text))
    def __call__(self, text):
        last = None
        for l in text.split("\n"):
            l = l.strip()
            if not l or l.startswith(";"): continue
            last = self._emit(Ins(l))
        return last
    def _emit(self, c):
        if c.kind == "label":
            self.clean()
            self.ins.append(c); return None
        if c.kind == "branch" and not c.op.startswith("s_endpgm"):
            self._pad_for(c)
            self.clean(extra=1)
            self.ins.append(c); return None
        if self.check_pending:
            for r in list(c.rd) + list(c.wr):
                if r in self.pend:
                    raise RuntimeError(f"register {r} has a pending load {self.pend[r]} at: {c.text}")
        self._pad_for(c)
        self.ins.append(c)
        if c.kind == "vmem":
            self.vm_next += 1; self.vm.append(self.vm_next)
            for r in c.wr: self.pend[r] = ("vm", self.vm_next)
            return self.vm_next
        if c.kind == "ds":
            self.lg_next += 1; self.lg.append(self.lg_next)
            for r in c.wr: self.pend[r] = ("lg", self.lg_next)
            return self.lg_next
        if c.kind == "smem":
            for r in c.wr: self.pend[r] = ("sm", 0)
            self.smem_out = True
        if c.op == "s_waitcnt":
            m = re.search(r"vmcnt\((\d+)\)", c.text)
            if m:
                n = int(m.group(1)); self.vm = self.vm[len(self.vm) - n:] if n < len(self.vm) and n > 0 else ([] if n == 0 else self.vm)
            m = re.search(r"lgkmcnt\((\d+)\)", c.text)
            if m:
                n = int(m.group(1)); self.lg = self.lg[len(self.lg) - n:] if n < len(self.lg) and n > 0 else ([] if n == 0 else self.lg)
                if n == 0:
                    self.pend = {r: v for r, v in self.pend.items() if v[0] != "sm"}
                    self.smem_out = False
            self.pend = {r: v for r, v in self.pend.items()
                         if v[0] == "sm" or (v[0] == "vm" and v[1] in self.vm) or (v[0] == "lg" and v[1] in self.lg)}
        return None
    def _pad_for(self, c):
        dist, req = 0, 0
        for p in reversed(self.ins):
            if p.kind == "label":
                break
            k = need(p, c)
            if k > dist: req = max(req, k - dist)
            dist += p.states
            if dist >= MAXD: break
        self._nop(req)
    def _nop(self, n):
        while n > 0:
            k = min(n, 16)
            self.ins.append(Ins(f"s_nop {k-1}")); self.nops_inserted += k; n -= k
    def clean(self, extra=0):
        dist, req = extra, 0
        for p in reversed(self.ins):
            if p.kind == "label": break
            k = 0
            if p.kind == "mfma": k = 8
            elif p.kind in VALU_KINDS:
                k = 2
                if any(r[0] != "v" for r in p.wr): k = 5
            elif p.store_data and len(p.store_data) >= 3: k = 2
            if k > dist: req = max(req, k - dist)
            dist += p.states
            if dist >= MAXD: break
        self._nop(req)
    def wait_vm(self, vid):
        if vid is None or vid not in self.vm: return
        n = len(self.vm) - 1 - self.vm.index(vid)
        assert n <= 63, n
        self(f"s_waitcnt vmcnt({n})")
    def wait_vm_all(self):
        self("s_waitcnt vmcnt(0)")
    def wait_lg(self, lid):
        if lid is None or lid not in self.lg: return
        n = len(self.lg) - 1 - self.lg.index(lid)
        if getattr(self, "smem_out", False): n = 0
        assert n <= 15, n
        self(f"s_waitcnt lgkmcnt({n})")
    def wait_lg_all(self):
        self("s_waitcnt lgkmcnt(0)")
    def reset_counters(self):
        self.vm, self.lg, self.pend = [], [], {}
    def label(self, name):
        self(name + ":")
    def text(self):
        return "\n".join(("" if i.kind == "label" else "    ") + i.text for i in self.ins) + "\n"
```

```python
import sys, struct, math
from collections import deque
sys.path.insert(0, "dev")
from prog import Prog
from asmlib import kernel_header, kernel_desc, build_co

KN = "gated_mix__mha_block_cached__geglu_ffn__decode_kernel"

def f2u(x): return struct.unpack("<I", struct.pack("<f", x))[0]
def lit(x): return hex(f2u(x))

QP_OFF  = 0
Y_OFF   = 1 << 20
ML_OFF  = 2 << 20
FP_OFF  = (2 << 20) + 65536
ST_OFF  = 256 << 20
LDS_Q, LDS_T, LDS_ML, LDS_O, LDS_H = 0, 256, 288, 512, 1536
LDS_BYTES = 2048

SEL_LO, SEL_HI = 0x05040100, 0x07060302
KV_BYTES = 128 << 20
SC = (128 ** -0.5) * math.log2(math.e)

class Cfg:
    W = 5
    NPRO = 40
    CATCH = 3
    NX = 4
    kvflags = "nt"
    woflags = ""
    wqflags = "nt"
    ffnflags = "nt"
    wo_start = 12
    wo_step = 3
    stamps = False
    spin_max = 100000
    sleep = 1

def srd(p, d, base, size):
    p(f"s_mov_b32 s{d}, s{base}")
    p(f"s_and_b32 s{d+1}, s{base+1}, 0xffff")
    p(f"s_mov_b32 s{d+2}, {hex(size)}")
    p(f"s_mov_b32 s{d+3}, 0x20000")

def v4(r): return f"v[{r}:{r+3}]"
def v2(r): return f"v[{r}:{r+1}]"

def rg_masks(p, d):
    p(f"s_mov_b32 s{d}, 0xffff0000");   p(f"s_mov_b32 s{d+1}, 0")
    p(f"s_mov_b32 s{d+2}, 0");          p(f"s_mov_b32 s{d+3}, 0x0000ffff")
    p(f"s_mov_b32 s{d+4}, 0");          p(f"s_mov_b32 s{d+5}, 0xffff0000")

def sel4(p, dst, a0, a1, a2, a3, m):
    p(f"v_cndmask_b32_e64 v{dst}, v{a0}, v{a1}, s[{m}:{m+1}]")
    p(f"v_cndmask_b32_e64 v{dst}, v{dst}, v{a2}, s[{m+2}:{m+3}]")
    p(f"v_cndmask_b32_e64 v{dst}, v{dst}, v{a3}, s[{m+4}:{m+5}]")

DPP = "row_mask:0xf bank_mask:0xf"

def allreduce(p, op, t, t2):
    p(f"{op}_dpp v{t}, v{t}, v{t} row_ror:4 {DPP}")
    p(f"{op}_dpp v{t}, v{t}, v{t} row_ror:8 {DPP}")
    rows_reduce(p, op, t, t2)

def rows_reduce(p, op, t, t2):
    p(f"v_mov_b32 v{t2}, v{t}")
    p(f"v_permlane16_swap_b32 v{t}, v{t2}")
    p(f"{op} v{t}, v{t}, v{t2}")
    p(f"v_mov_b32 v{t2}, v{t}")
    p(f"v_permlane32_swap_b32 v{t}, v{t2}")
    p(f"{op} v{t}, v{t}, v{t2}")

def stamp(p, cfg, sreg):
    if cfg.stamps:
        p(f"s_memrealtime s[{sreg}:{sreg+1}]")

def gen_attention(p, cfg):
    W = cfg.W
    vL, vKoff, vVoff, vWoff = 0, 1, 2, 3
    vM = 4
    vAcc = 8
    vD = 12
    vS = 20
    vT = 52
    vLand = 64
    vQm = 64
    vRing = 96
    vWT = 128
    def buf(i): return vRing + 4 * i
    XBUFS = [80, 84, 88, 92]
    sK, sV, sWo, sWs = 4, 8, 12, 48
    sWg, sOff, s4096, sC, sSelLo, sSelHi, sWoB, sTmp = 52, 53, 54, 55, 56, 57, 58, 59
    sQmask, sRg, sT0, sT1, sP = 60, 68, 74, 75, 77
    ST = 80

    p.label("L_ATT")
    stamp(p, cfg, ST)
    p("s_waitcnt lgkmcnt(0)")
    srd(p, sK, 18, KV_BYTES)
    p(f"s_lshl_b32 s{sTmp}, s46, 5")
    p(f"s_add_u32 s{sTmp}, s{sTmp}, s44")
    p(f"s_lshl_b32 s{sWg}, s{sTmp}, 20")
    p(f"s_lshl_b32 s{sTmp}, s47, 19")
    p(f"s_add_u32 s{sWg}, s{sWg}, s{sTmp}")
    p(f"s_lshl_b32 s76, s3, 10")
    p(f"s_mov_b32 s{sOff}, s{sWg}")
    p(f"s_movk_i32 s{s4096}, 0x1000")
    p(f"v_lshrrev_b32 v{vT}, 4, v{vL}")
    p(f"v_bfe_u32 v{vT+1}, v{vL}, 2, 2")
    p(f"v_and_b32 v{vT+2}, 3, v{vL}")
    p(f"v_lshlrev_b32 v{vKoff}, 6, v{vT}")
    p(f"v_lshl_add_u32 v{vKoff}, v{vT+1}, 8, v{vKoff}")
    p(f"v_lshl_add_u32 v{vKoff}, v{vT+2}, 4, v{vKoff}")
    p(f"v_add_u32 v{vKoff}, s76, v{vKoff}")

    vid = {}
    bufof = {}
    free_low = deque(range(8))
    free_hi = deque(range(8, 40))
    free_x = deque(XBUFS)
    state = dict(I=0)
    use_x = [True]
    def reg_of(n): return bufof[n]
    def alloc(n):
        if n < cfg.NPRO:
            if n < 8: free_low.remove(n)
            else: free_hi.remove(n)
            return buf(n)
        if free_low: return buf(free_low.popleft())
        if n < 128 and free_hi: return buf(free_hi.popleft())
        if free_x: return free_x.popleft()
        raise RuntimeError(f"no buffer for load {n}")
    def can_alloc(n):
        return bool(free_low) or (n < 128 and bool(free_hi)) or bool(free_x)
    def release(n):
        r = bufof[n]
        if r in XBUFS:
            if use_x[0]: free_x.append(r)
        else:
            i = (r - vRing) // 4
            (free_low if i < 8 else free_hi).append(i)
    def issue():
        n = state["I"]
        if n >= W: p.wait_vm(vid[n - W])
        r = alloc(n); bufof[n] = r
        if n == 128:
            p(f"s_mov_b32 s{sOff}, s{sWg}")
        if n < 128:
            vid[n] = p(f"buffer_load_dwordx4 {v4(r)}, v{vKoff}, s[{sK}:{sK+3}], s{sOff} offen {cfg.kvflags}")
        else:
            vid[n] = p(f"buffer_load_dwordx4 {v4(r)}, v{vVoff}, s[{sV}:{sV+3}], s{sOff} offen {cfg.kvflags}")
        if n != 127 and n != 255:
            p(f"s_add_u32 s{sOff}, s{sOff}, s{s4096}")
        state["I"] = n + 1

    for _ in range(W): issue()
    srd(p, sV, 20, KV_BYTES)
    srd(p, sWo, 24, 4 << 20)
    srd(p, sWs, 40, 512 << 20)
    p(f"s_mov_b32 s{sC}, {lit(SC)}")
    p(f"s_mov_b32 s{sSelLo}, {hex(SEL_LO)}")
    p(f"s_mov_b32 s{sSelHi}, {hex(SEL_HI)}")
    p(f"s_lshl_b32 s{sWoB}, s44, 17")
    p(f"s_lshl_b32 s{sP}, s44, 1")
    p(f"s_add_u32 s{sP}, s{sP}, s47")
    rg_masks(p, sRg)
    p(f"v_lshlrev_b32 v{vVoff}, 4, v{vL}")
    p(f"v_add_u32 v{vVoff}, s76, v{vVoff}")
    p(f"v_and_b32 v{vT+3}, 15, v{vL}")
    p(f"s_lshl_b32 s{sTmp}, s3, 8")
    p(f"v_lshlrev_b32 v{vWoff}, 13, v{vT}")
    p(f"v_lshl_add_u32 v{vWoff}, v{vT+3}, 4, v{vWoff}")
    p(f"v_add_u32 v{vWoff}, s{sTmp}, v{vWoff}")
    p(f"v_lshrrev_b32 v{vT+4}, 1, v{vT+3}")
    p(f"v_and_b32 v{vT+5}, 1, v{vL}")
    p(f"v_mov_b32 v{vT+6}, 0xffff")
    p(f"v_mov_b32 v{vT+7}, 0xffff0000")
    p(f"v_cmp_eq_u32 vcc, 1, v{vT+5}")
    p(f"v_cndmask_b32 v{vT+6}, v{vT+6}, v{vT+7}, vcc")
    for r in range(4):
        p(f"v_cmp_eq_u32 vcc, {r}, v{vT+4}")
        p(f"v_cndmask_b32 v{vM+r}, 0, v{vT+6}, vcc")
    for i in range(4):
        p(f"v_cmp_eq_u32 s[{sQmask+2*i}:{sQmask+2*i+1}], {i}, v{vT+1}")
    vQa = vT + 8
    p(f"v_lshlrev_b32 v{vQa}, 6, v{vT}")
    p(f"v_lshl_add_u32 v{vQa}, v{vT+2}, 4, v{vQa}")
    for r in range(4): p(f"v_mov_b32 v{vAcc+r}, 0")
    while state["I"] < cfg.NPRO: issue()
    p("s_barrier")
    stamp(p, cfg, ST+2)
    vQ = vT + 4
    vTT = vT + 10
    a = p(f"ds_read_b128 {v4(vQ)}, v{vQa} offset:{LDS_Q}")
    p(f"v_mov_b32 v{vTT}, 0")
    b = p(f"ds_read_b64 {v2(vTT)}, v{vTT} offset:{LDS_T}") if False else None
    p.wait_lg(a)
    for i in range(4):
        for r in range(4):
            p(f"v_cndmask_b32_e64 v{vQm+4*i+r}, 0, v{vQ+r}, s[{sQmask+2*i}:{sQmask+2*i+1}]")

    post = deque()
    def consume_k(n):
        G, i = n >> 2, n & 3
        d = vD + 4 * (G & 1)
        p.wait_vm(vid[n])
        c = "0" if i == 0 else v4(d)
        p(f"v_mfma_f32_16x16x32_bf16 {v4(d)}, {v4(bufof[n])}, {v4(vQm+4*i)}, {c}")
        release(n)
        if i == 1 and post: score_post(post.popleft())
        if i == 3: post.append(G)
    def score_post(G):
        d = vD + 4 * (G & 1)
        s = vS + G
        p(f"v_mov_b32_dpp v{s}, v{d} quad_perm:[0,0,0,0] {DPP}")
        p(f"v_mov_b32_dpp v{vT}, v{d+2} quad_perm:[2,2,2,2] {DPP}")
        p(f"s_nop 0")
        p(f"v_add_f32_dpp v{s}, v{d+1}, v{s} quad_perm:[1,1,1,1] {DPP}")
        p(f"v_add_f32_dpp v{vT}, v{d+3}, v{vT} quad_perm:[3,3,3,3] {DPP}")
        p(f"v_add_f32 v{s}, v{s}, v{vT}")
    C = 0
    while C < 128:
        ncons = cfg.CATCH if state["I"] - C > W else 1
        for _ in range(ncons):
            if C < 128 and state["I"] - C >= W:
                consume_k(C); C += 1
        if state["I"] < 128 + W:
            issue()
    while post: score_post(post.popleft())
    stamp(p, cfg, ST+4)

    extra = [cfg.NX]
    def maybe_issue():
        if extra[0] > 0 and can_alloc(state["I"]):
            issue(); extra[0] -= 1
    t, t2 = vT, vT + 1
    p(f"v_max3_f32 v{t}, v{vS}, v{vS+1}, v{vS+2}")
    for k in range(3, 31, 2):
        p(f"v_max3_f32 v{t}, v{t}, v{vS+k}, v{vS+k+1}")
    p(f"v_max_f32 v{t}, v{t}, v{vS+31}")
    allreduce(p, "v_max_f32", t, t2)
    vML = vT + 2
    p(f"v_mul_f32 v{vML}, s{sC}, v{t}")
    maybe_issue()
    for G in range(32):
        p(f"v_fma_f32 v{vS+G}, v{vS+G}, s{sC}, -v{vML}")
    for G in range(32):
        p(f"v_exp_f32 v{vS+G}, v{vS+G}")
        if G == 15: maybe_issue()
    maybe_issue()
    p(f"v_add_f32 v{t}, v{vS}, v{vS+1}")
    p(f"v_add_f32 v{t2}, v{vS+2}, v{vS+3}")
    for G in range(4, 32, 2):
        p(f"v_add_f32 v{t}, v{t}, v{vS+G}")
        p(f"v_add_f32 v{t2}, v{t2}, v{vS+G+1}")
    p(f"v_add_f32 v{t}, v{t}, v{t2}")
    for G in range(32):
        p(f"v_cvt_pk_bf16_f32 v{vS+G}, v{vS+G}, v{vS+G}")
    maybe_issue()
    allreduce(p, "v_add_f32", t, t2)
    p(f"v_mov_b32 v{vML+1}, v{t}")
    p(f"s_lshl_b32 s{sTmp}, s3, 3")
    p(f"v_mov_b32 v{t2}, s{sTmp}")
    p("s_mov_b64 exec, 1")
    p(f"ds_write_b64 v{t2}, {v2(vML)} offset:{LDS_ML}")
    p("s_mov_b64 exec, -1")

    wo_vid = {}
    def wo_load(j):
        kk, rho = j >> 3, j & 7
        pair = j >> 1
        r = vLand + 8 * (pair % 4) + 4 * (j & 1)
        if rho % 4 == 0:
            p(f"s_add_u32 s{sTmp}, s{sWoB}, {(32*kk + rho) * 1024}")
        off = (rho % 4) * 1024
        wo_vid[j] = p(f"buffer_load_dwordx4 {v4(r)}, v{vWoff}, s[{sWo}:{sWo+3}], s{sTmp} offen offset:{off} {cfg.woflags}")
    def wo_perm(pair):
        kk, pp = pair >> 2, pair & 3
        r0 = vLand + 8 * (pair % 4); r1 = r0 + 4
        p.wait_vm(wo_vid[2 * pair + 1])
        for q in range(4):
            p(f"v_perm_b32 v{vWT + 32*kk + 4*(2*q) + pp}, v{r1+q}, v{r0+q}, s{sSelLo}")
            p(f"v_perm_b32 v{vWT + 32*kk + 4*(2*q+1) + pp}, v{r1+q}, v{r0+q}, s{sSelHi}")
    wo_ev = {}
    for j in range(32):
        wo_ev.setdefault(cfg.wo_start + cfg.wo_step * j, []).append(("load", j))
        if j & 1: wo_ev.setdefault(cfg.wo_start + cfg.wo_step * j + W + 1, []).append(("perm", j >> 1))
    assert max(wo_ev) < 128
    def consume_v(m):
        n = 128 + m
        G, i = m >> 2, m & 3
        a0 = vD + 4 * (m & 1)
        for r in range(4):
            p(f"v_and_b32_dpp v{a0+r}, v{vS+G}, v{vM+r} row_newbcast:{4*i} {DPP}")
        p.wait_vm(vid[n])
        p(f"v_mfma_f32_16x16x32_bf16 {v4(vAcc)}, {v4(a0)}, {v4(bufof[n])}, {v4(vAcc)}")
        release(n)
    free_x.clear(); use_x[0] = False
    last_x = max([n - 128 for n in bufof if n >= 128 and bufof[n] in XBUFS] + [-1])
    assert cfg.wo_start > last_x, (cfg.wo_start, last_x)
    C = 0
    while C < 128:
        ncons = cfg.CATCH if state["I"] - (128 + C) > W else 1
        if state["I"] == 256: ncons = 128
        for _ in range(ncons):
            if C < 128 and (state["I"] - (128 + C) >= W or state["I"] == 256):
                consume_v(C)
                for ev, j in wo_ev.get(C, []):
                    if ev == "load": wo_load(j)
                    else: wo_perm(j)
                C += 1
        if state["I"] < 256:
            issue()
    stamp(p, cfg, ST+6)

    p(f"v_cvt_pk_bf16_f32 v{vT}, v{vAcc}, v{vAcc+1}")
    p(f"v_cvt_pk_bf16_f32 v{vT+1}, v{vAcc+2}, v{vAcc+3}")
    p(f"v_and_b32 v{vT+2}, 15, v{vL}")
    p(f"v_lshrrev_b32 v{vT+3}, 4, v{vL}")
    p(f"v_lshlrev_b32 v{vT+4}, 4, v{vT+2}")
    p(f"v_lshl_add_u32 v{vT+4}, v{vT+3}, 3, v{vT+4}")
    p(f"s_lshl_b32 s{sTmp}, s3, 8")
    p(f"v_add_u32 v{vT+4}, s{sTmp}, v{vT+4}")
    p("s_mov_b32 exec_hi, 0")
    p(f"ds_write_b64 v{vT+4}, {v2(vT)} offset:{LDS_O}")
    p("s_mov_b32 exec_hi, -1")
    p(f"v_and_b32 v{vT+5}, 3, v{vL}")
    p(f"v_lshlrev_b32 v{vT+5}, 8, v{vT+5}")
    p(f"v_lshl_add_u32 v{vT+5}, v{vT+3}, 4, v{vT+5}")
    vYo = vT + 6
    p(f"v_lshrrev_b32 v{vT+7}, 2, v{vT+2}")
    p(f"v_lshlrev_b32 v{vYo}, 14, v{vT+7}")
    p(f"v_and_b32 v{vT+7}, 3, v{vT+2}")
    p(f"v_lshl_add_u32 v{vYo}, v{vT+7}, 6, v{vYo}")
    p(f"v_lshl_add_u32 v{vYo}, v{vT+3}, 4, v{vYo}")
    sY = 76
    p(f"s_lshl_b32 s{sY}, s46, 4")
    p(f"s_lshl_b32 s{sTmp}, s3, 2")
    p(f"s_add_u32 s{sY}, s{sY}, s{sTmp}")
    p(f"s_lshl_b32 s{sY}, s{sY}, 14")
    p(f"s_lshl_b32 s{sTmp}, s{sP}, 8")
    p(f"s_add_u32 s{sY}, s{sY}, s{sTmp}")
    p(f"s_add_u32 s{sY}, s{sY}, {hex(Y_OFF)}")
    p(f"v_mov_b32 v{vT+8}, 0")
    p.wait_lg_all()
    p("s_barrier")
    vA = vRing
    vF = vRing + 16
    vTG = vRing + 24
    ids = []
    for kk in range(4):
        ids.append(p(f"ds_read_b128 {v4(vA+4*kk)}, v{vT+5} offset:{LDS_O + 64*kk}"))
    m0 = p(f"ds_read_b128 {v4(vF)}, v{vT+8} offset:{LDS_ML}")
    m1 = p(f"ds_read_b128 {v4(vF+4)}, v{vT+8} offset:{LDS_ML+16}")
    tg = p(f"ds_read_b64 {v2(vTG)}, v{vT+8} offset:{LDS_T}")
    vY = vLand
    def proj(kk):
        for e in range(8):
            c = "0" if kk == 0 else v4(vY + 4*e)
            p(f"v_mfma_f32_16x16x32_bf16 {v4(vY+4*e)}, {v4(vA+4*kk)}, {v4(vWT+32*kk+4*e)}, {c}")
    p.wait_lg(ids[0]); proj(0)
    p.wait_lg(ids[1]); proj(1)
    p.wait_lg(tg)
    m = [vF, vF+2, vF+4, vF+6]; l = [vF+1, vF+3, vF+5, vF+7]
    vMx, vLs = vS, vS + 2
    p(f"v_max3_f32 v{vMx}, v{m[0]}, v{m[1]}, v{m[2]}")
    p(f"v_max_f32 v{vMx}, v{vMx}, v{m[3]}")
    for r in range(4): p(f"v_sub_f32 v{m[r]}, v{m[r]}, v{vMx}")
    proj(2)
    for r in range(4): p(f"v_exp_f32 v{m[r]}, v{m[r]}")
    p(f"v_mov_b32 v{vS+1}, v{vTG}")
    p(f"v_mov_b32 v{vS+3}, v{vTG+1}")
    proj(3)
    p(f"v_mul_f32 v{vLs}, v{m[0]}, v{l[0]}")
    for r in range(1, 4): p(f"v_fmac_f32 v{vLs}, v{m[r]}, v{l[r]}")
    p(f"s_lshl_b32 s{sTmp}, s46, 6")
    p(f"s_add_u32 s{sTmp}, s{sTmp}, s{sP}")
    p(f"s_lshl_b32 s{sTmp}, s{sTmp}, 4")
    p(f"s_add_u32 s{sTmp}, s{sTmp}, {hex(ML_OFF)}")
    vG = vS + 4
    vSel = vS + 8
    for par in range(2):
        for r in range(4):
            sel4(p, vSel + 4*par + r, vY + 4*(0+par) + r, vY + 4*(2+par) + r, vY + 4*(4+par) + r, vY + 4*(6+par) + r, sRg)
    for par in range(2):
        p(f"v_mul_f32 v{vG+2*par}, v{m[0]}, v{vSel+4*par}")
        for r in range(1, 4): p(f"v_fmac_f32 v{vG+2*par}, v{m[r]}, v{vSel+4*par+r}")
    p(f"v_mov_b32 v{vG+1}, v{vTG}")
    p(f"v_mov_b32 v{vG+3}, v{vTG+1}")
    p(f"buffer_store_dwordx4 {v4(vG)}, v{vYo}, s[{sWs}:{sWs+3}], s{sY} offen sc1")
    p("s_cmp_lg_u32 s3, 0")
    p("s_cbranch_scc1 L_END")
    p("s_mov_b64 exec, 1")
    p(f"buffer_store_dwordx4 {v4(vS)}, v{vT+8}, s[{sWs}:{sWs+3}], s{sTmp} offen sc1")
    if cfg.stamps:
        stamp(p, cfg, ST+8)
        p("s_waitcnt lgkmcnt(0)")
        p(f"s_mul_i32 s{sTmp}, s2, 128")
        p(f"s_add_u32 s{sTmp}, s{sTmp}, {hex(ST_OFF)}")
        for k in range(5):
            p(f"v_mov_b32 v{vT}, s{ST+2*k}"); p(f"v_mov_b32 v{vT+1}, s{ST+2*k+1}")
            p(f"buffer_store_dwordx2 {v2(vT)}, v{vT+8}, s[{sWs}:{sWs+3}], s{sTmp} offen offset:{8*k}")
    p("s_endpgm")

class AuxRegs: pass

def spin_begin(p, cfg, name, sCnt):
    p(f"s_mov_b32 s{sCnt}, {cfg.spin_max}")
    p.label(name)
def spin_end(p, cfg, name, sCnt):
    p(f"s_cbranch_vccz {name}_done")
    if cfg.sleep: p(f"s_sleep {cfg.sleep}")
    p(f"s_sub_u32 s{sCnt}, s{sCnt}, 1")
    p(f"s_cmp_lg_u32 s{sCnt}, 0")
    p(f"s_cbranch_scc1 {name}")
    p.label(name + "_done")

def check_tags(p, bad, t1, t2, regs, sT0, sT1, first=True):
    for k, r in enumerate(regs):
        p(f"v_xor_b32 v{t1}, s{sT0}, v{r+1}")
        p(f"v_xor_b32 v{t2}, s{sT1}, v{r+3}")
        if first and k == 0: p(f"v_or_b32 v{bad}, v{t1}, v{t2}")
        else: p(f"v_or3_b32 v{bad}, v{bad}, v{t1}, v{t2}")

def transpose_block(p, dst, src, sLo, sHi):
    for pp in range(4):
        for q in range(4):
            p(f"v_perm_b32 v{dst + 4*(2*q) + pp}, v{src + 4*(2*pp+1) + q}, v{src + 4*(2*pp) + q}, s{sLo}")
            p(f"v_perm_b32 v{dst + 4*(2*q+1) + pp}, v{src + 4*(2*pp+1) + q}, v{src + 4*(2*pp) + q}, s{sHi}")

def gen_aux(p, cfg):
    sX, sWq, sDbg, sWs = 4, 8, 12, 48
    sWg, sWu, sWd, sOut, sGw = 52, 56, 60, 64, 84
    sRg, sT0, sT1, sA, sB, sC2, sD = 68, 74, 75, 76, 77, 78, 79
    sLo, sHi, sCnt = 80, 81, 82
    ST = 88
    vL, vI, vG_, vTmp = 0, 1, 2, 3
    vZero = 4
    p.label("L_AUX")
    stamp(p, cfg, ST)
    p("s_waitcnt lgkmcnt(0)")
    srd(p, sDbg, 38, 256)
    p(f"v_mov_b32 v{vZero}, 0")
    p("s_cmp_lg_u32 s2, 0")
    p("s_cbranch_scc1 L_NONCE_SENT")
    p("s_memrealtime s[76:77]")
    p("s_waitcnt lgkmcnt(0)")
    p("s_or_b32 s76, s76, 1")
    p("v_mov_b32 v5, s76")
    p("s_mov_b64 exec, 1")
    p(f"buffer_store_dword v5, v{vZero}, s[{sDbg}:{sDbg+3}], 0 offen sc1")
    p("s_mov_b64 exec, -1")
    p.label("L_NONCE_SENT")
    p.reset_counters()
    srd(p, sX, 16, 4096)
    srd(p, sWq, 22, 4 << 20)
    srd(p, sWs, 40, 512 << 20)
    p(f"s_mov_b32 s{sLo}, {hex(SEL_LO)}")
    p(f"s_mov_b32 s{sHi}, {hex(SEL_HI)}")
    p(f"v_and_b32 v{vI}, 15, v{vL}")
    p(f"v_lshrrev_b32 v{vG_}, 4, v{vL}")
    vXo, vWo = 5, 6
    p(f"v_and_b32 v{vTmp}, 3, v{vL}")
    p(f"v_lshlrev_b32 v{vXo}, 10, v{vTmp}")
    p(f"v_lshl_add_u32 v{vXo}, v{vG_}, 4, v{vXo}")
    p(f"s_lshl_b32 s{sA}, s45, 7")
    p(f"v_lshlrev_b32 v{vWo}, 16, v{vG_}")
    p(f"v_lshl_add_u32 v{vWo}, v{vI}, 4, v{vWo}")
    p(f"s_lshl_b32 s{sB}, s45, 19")
    p(f"s_lshl_b32 s{sC2}, s44, 8")
    p(f"s_add_u32 s{sB}, s{sB}, s{sC2}")
    vXA = 8
    vLa, vLb = 16, 48
    vTr = 80
    vAc = 112
    xa = [p(f"buffer_load_dwordx4 {v4(vXA+4*kk)}, v{vXo}, s[{sX}:{sX+3}], s{sA} offen offset:{64*kk}") for kk in range(2)]
    wl = []
    for kk in range(2):
        for rho in range(8):
            p(f"s_add_u32 s{sC2}, s{sB}, {(32*kk+rho)*8192}")
            wl.append(p(f"buffer_load_dwordx4 {v4((vLa, vLb)[kk] + 4*rho)}, v{vWo}, s[{sWq}:{sWq+3}], s{sC2} offen {cfg.wqflags}"))
    vN = 7
    nid = p(f"buffer_load_dword v{vN}, v{vZero}, s[{sDbg}:{sDbg+3}], 0 offen sc1")
    rg_masks(p, sRg)
    vQo = 144
    p(f"v_lshlrev_b32 v{vQo}, 6, v{vI}")
    p(f"v_lshl_add_u32 v{vQo}, v{vG_}, 4, v{vQo}")
    p(f"s_lshl_b32 s{sD}, s44, 3")
    p(f"s_add_u32 s{sD}, s{sD}, s45")
    p(f"s_lshl_b32 s{sD}, s{sD}, 12")
    for kk in range(2):
        p.wait_vm(wl[8*kk+7])
        transpose_block(p, vTr, (vLa, vLb)[kk], sLo, sHi)
        for e in range(8):
            c = "0" if kk == 0 else v4(vAc + 4*e)
            p(f"v_mfma_f32_16x16x32_bf16 {v4(vAc+4*e)}, {v4(vXA+4*kk)}, {v4(vTr+4*e)}, {c}")
    p.wait_vm(nid)
    p(f"v_cmp_eq_u32 vcc, 0, v{vN}")
    p("s_cbranch_vccz L_NONCE_OK")
    spin_begin(p, cfg, "L_NONCE_SPIN", sCnt)
    p(f"buffer_load_dword v{vN}, v{vZero}, s[{sDbg}:{sDbg+3}], 0 offen sc1")
    p("s_waitcnt vmcnt(0)")
    p(f"v_cmp_eq_u32 vcc, 0, v{vN}")
    spin_end(p, cfg, "L_NONCE_SPIN", sCnt)
    p.label("L_NONCE_OK")
    p.reset_counters()
    p(f"v_readfirstlane_b32 s{sT0}, v{vN}")
    p(f"s_xor_b32 s{sT1}, s{sT0}, 0x5bd1e995")
    vGr = 148
    for b in range(4):
        g = vGr + 4*b
        sel4(p, g,   vAc + 0 + b, vAc + 8 + b,  vAc + 16 + b, vAc + 24 + b, sRg)
        sel4(p, g+2, vAc + 4 + b, vAc + 12 + b, vAc + 20 + b, vAc + 28 + b, sRg)
        p(f"v_mov_b32 v{g+1}, s{sT0}")
        p(f"v_mov_b32 v{g+3}, s{sT1}")
        p(f"buffer_store_dwordx4 {v4(g)}, v{vQo}, s[{sWs}:{sWs+3}], s{sD} offen offset:{1024*b} sc1")
    vLo16 = 145
    p(f"v_lshlrev_b32 v{vLo16}, 4, v{vL}")
    p(f"s_lshl_b32 s{sA}, s44, 15")
    p(f"s_lshl_b32 s{sB}, s46, 10")
    p(f"s_add_u32 s{sA}, s{sA}, s{sB}")
    vQg = 16
    vBad, vT1, vT2 = 146, 147, 164
    spin_begin(p, cfg, "L_QSPIN", sCnt)
    for j in range(8):
        p(f"s_add_u32 s{sB}, s{sA}, {4096*j}")
        p(f"buffer_load_dwordx4 {v4(vQg+4*j)}, v{vLo16}, s[{sWs}:{sWs+3}], s{sB} offen sc1")
    p("s_waitcnt vmcnt(0)")
    check_tags(p, vBad, vT1, vT2, [vQg + 4*j for j in range(8)], sT0, sT1)
    p(f"v_cmp_ne_u32 vcc, 0, v{vBad}")
    spin_end(p, cfg, "L_QSPIN", sCnt)
    p.reset_counters()
    for j in range(1, 8):
        p(f"v_add_f32 v{vQg}, v{vQg}, v{vQg+4*j}")
        p(f"v_add_f32 v{vQg+2}, v{vQg+2}, v{vQg+4*j+2}")
    p(f"v_cvt_pk_bf16_f32 v{vQg}, v{vQg}, v{vQg+2}")
    p(f"v_lshlrev_b32 v{vT1}, 2, v{vL}")
    p(f"ds_write_b32 v{vT1}, v{vQg} offset:{LDS_Q}")
    p(f"v_mov_b32 v{vQg+2}, s{sT0}")
    p(f"v_mov_b32 v{vQg+3}, s{sT1}")
    p("s_mov_b64 exec, 1")
    p(f"ds_write_b64 v{vZero}, {v2(vQg+2)} offset:{LDS_T}")
    p("s_mov_b64 exec, -1")
    p.wait_lg_all()
    p("s_barrier")
    stamp(p, cfg, ST+2)
    p("s_and_b32 s76, s44, 1")
    p("s_and_b32 s77, s76, s47")
    p("s_cmp_lg_u32 s77, 0")
    p("s_cbranch_scc1 L_RED")
    p("s_or_b32 s77, s76, s47")
    p("s_cmp_lg_u32 s77, 0")
    p("s_cbranch_scc1 L_AUX_EXIT")
    p("s_lshr_b32 s83, s44, 1")
    p("s_lshl_b32 s77, s46, 4")
    p("s_add_u32 s83, s83, s77")
    p("s_cmp_ge_u32 s83, 28")
    p("s_cbranch_scc1 L_AUX_EXIT")
    gen_ffn(p, cfg, locals())
    p.label("L_AUX_EXIT")
    if cfg.stamps:
        aux_stamps(p, cfg, ST, sWs, vZero)
    p("s_endpgm")
    gen_reducer(p, cfg, locals())

def aux_stamps(p, cfg, ST, sWs, vZero):
    stamp(p, cfg, ST+4)
    p("s_waitcnt lgkmcnt(0)")
    p("s_mul_i32 s76, s2, 128")
    p(f"s_add_u32 s76, s76, {hex(ST_OFF + 64)}")
    p("s_mov_b64 exec, 1")
    for k in range(3):
        p(f"v_mov_b32 v8, s{ST+2*k}"); p(f"v_mov_b32 v9, s{ST+2*k+1}")
        p(f"buffer_store_dwordx2 v[8:9], v{vZero}, s[{sWs}:{sWs+3}], s76 offen offset:{8*k}")

def gen_ffn(p, cfg, L):
    sX, sWs, sWg, sWu, sWd = L["sX"], L["sWs"], L["sWg"], L["sWu"], L["sWd"]
    sRg, sT0, sT1, sA, sB, sC2, sD, sLo, sHi = (L[k] for k in ("sRg","sT0","sT1","sA","sB","sC2","sD","sLo","sHi"))
    vL, vI, vG_, vTmp, vZero = L["vL"], L["vI"], L["vG_"], L["vTmp"], L["vZero"]
    sF = 83
    FB = 512 * 1792 * 2
    srd(p, sWg, 28, FB); srd(p, sWu, 30, FB); srd(p, sWd, 32, FB)
    vXo, vWo = 5, 6
    p(f"v_and_b32 v{vTmp}, 3, v{vL}")
    p(f"v_lshlrev_b32 v{vXo}, 10, v{vTmp}")
    p(f"v_bfe_u32 v{vTmp}, v{vL}, 2, 1")
    p(f"v_lshl_add_u32 v{vXo}, v{vTmp}, 9, v{vXo}")
    p(f"v_lshl_add_u32 v{vXo}, v{vG_}, 4, v{vXo}")
    p(f"v_lshrrev_b32 v{vTmp}, 3, v{vI}")
    p(f"v_lshlrev_b32 v{vTmp}, 5, v{vTmp}")
    p(f"v_add_u32 v{vTmp}, v{vTmp}, v{vG_}")
    p(f"s_movk_i32 s{sA}, {8*3584}")
    p(f"v_mul_lo_u32 v{vWo}, v{vTmp}, s{sA}")
    p(f"v_and_b32 v{vTmp}, 7, v{vI}")
    p(f"v_lshl_add_u32 v{vWo}, v{vTmp}, 4, v{vWo}")
    p(f"s_lshl_b32 s{sD}, s{sF}, 7")
    vXA = 8
    vLa, vLb = 40, 72
    vTr = 104
    vGa, vUa = 136, 168
    xa = [p(f"buffer_load_dwordx4 {v4(vXA+4*k)}, v{vXo}, s[{sX}:{sX+3}], 0 offen offset:{64*k}") for k in range(8)]
    steps = [(m, blk) for blk in range(8) for m in range(2)]
    ids = {}
    def issue(si):
        m, blk = steps[si]
        land = (vLa, vLb)[si & 1]
        srdr = (sWg, sWu)[m]
        for rho in range(8):
            p(f"s_add_u32 s{sC2}, s{sD}, {(32*blk+rho)*3584}")
            ids[(si, rho)] = p(f"buffer_load_dwordx4 {v4(land+4*rho)}, v{vWo}, s[{srdr}:{srdr+3}], s{sC2} offen {cfg.ffnflags}")
    issue(0)
    for si, (m, blk) in enumerate(steps):
        p.wait_vm(ids[(si, 7)])
        if si + 1 < len(steps): issue(si + 1)
        transpose_block(p, vTr, (vLa, vLb)[si & 1], sLo, sHi)
        acc = (vGa, vUa)[m]
        for e in range(8):
            c = "0" if blk == 0 else v4(acc + 4*e)
            p(f"v_mfma_f32_16x16x32_bf16 {v4(acc+4*e)}, {v4(vXA+4*blk)}, {v4(vTr+4*e)}, {c}")
    vDo = 7
    p(f"v_lshlrev_b32 v{vDo}, 13, v{vG_}")
    p(f"v_lshl_add_u32 v{vDo}, v{vI}, 4, v{vDo}")
    p(f"s_lshl_b32 s{sD}, s{sF}, 16")
    dsteps = [(seg, kk) for seg in range(4) for kk in range(2)]
    dids = {}
    def dissue(si):
        seg, kk = dsteps[si]
        land = (vLa, vLb)[si & 1]
        for rho in range(8):
            p(f"s_add_u32 s{sC2}, s{sD}, {(32*kk+rho)*1024 + 256*seg}")
            dids[(si, rho)] = p(f"buffer_load_dwordx4 {v4(land+4*rho)}, v{vDo}, s[{sWd}:{sWd+3}], s{sC2} offen {cfg.ffnflags}")
    dissue(0)
    vIdx = 5
    p(f"v_add_u32 v{vIdx}, 24, v{vL}")
    p(f"v_and_b32 v{vIdx}, 63, v{vIdx}")
    p(f"v_lshlrev_b32 v{vIdx}, 2, v{vIdx}")
    for base in range(0, 64, 8):
        ii = [p(f"ds_bpermute_b32 v{vTr+k}, v{vIdx}, v{vGa+base+k}") for k in range(8)]
        p.wait_lg(ii[-1])
        for k in range(8): p(f"v_add_f32 v{vGa+base+k}, v{vGa+base+k}, v{vTr+k}")
    K1 = -2.0 * math.log2(math.e) * math.sqrt(2.0 / math.pi)
    K2 = K1 * 0.044715
    vK1 = 6
    p(f"v_mov_b32 v{vK1}, {lit(K1)}")
    for k in range(32):
        g, u, t = vGa + k, vUa + k, vTr + k
        p(f"v_mul_f32 v{t}, v{g}, v{g}")
        p(f"v_fmamk_f32 v{t}, v{t}, {lit(K2)}, v{vK1}")
        p(f"v_mul_f32 v{t}, v{t}, v{g}")
    for k in range(32): p(f"v_exp_f32 v{vTr+k}, v{vTr+k}")
    for k in range(32): p(f"v_add_f32 v{vTr+k}, 1.0, v{vTr+k}")
    for k in range(32): p(f"v_rcp_f32 v{vTr+k}, v{vTr+k}")
    for k in range(32):
        p(f"v_mul_f32 v{vTr+k}, v{vTr+k}, v{vGa+k}")
    for k in range(32):
        p(f"v_mul_f32 v{vUa+k}, v{vTr+k}, v{vUa+k}")
    vHB = vTr
    for b in range(4):
        for q in range(4):
            p(f"v_cvt_pk_bf16_f32 v{vHB+4*b+q}, v{vUa+4*(2*q)+b}, v{vUa+4*(2*q+1)+b}")
    p(f"v_lshlrev_b32 v{vIdx}, 4, v{vL}")
    p("s_mov_b64 exec, 0xff")
    for b in range(4):
        p(f"ds_write_b128 v{vIdx}, {v4(vHB+4*b)} offset:{LDS_H + 128*b}")
    p("s_mov_b64 exec, -1")
    p(f"v_and_b32 v{vTmp}, 3, v{vL}")
    p(f"v_lshlrev_b32 v{vIdx}, 7, v{vTmp}")
    p(f"v_lshl_add_u32 v{vIdx}, v{vG_}, 4, v{vIdx}")
    vHA = 8
    p.wait_lg_all()
    ha = [p(f"ds_read_b128 {v4(vHA+4*kk)}, v{vIdx} offset:{LDS_H + 64*kk}") for kk in range(2)]
    vFo = 16
    p(f"v_lshrrev_b32 v{vTmp}, 2, v{vI}")
    p(f"v_lshlrev_b32 v{vFo}, 13, v{vTmp}")
    p(f"v_and_b32 v{vTmp}, 3, v{vI}")
    p(f"v_lshl_add_u32 v{vFo}, v{vTmp}, 6, v{vFo}")
    p(f"v_lshl_add_u32 v{vFo}, v{vG_}, 4, v{vFo}")
    p(f"s_lshl_b32 s{sA}, s{sF}, 8")
    p(f"s_add_u32 s{sA}, s{sA}, {hex(FP_OFF)}")
    p.wait_lg_all()
    vDa = vGa
    vGr = 20
    for si, (seg, kk) in enumerate(dsteps):
        p.wait_vm(dids[(si, 7)])
        if si + 1 < len(dsteps): dissue(si + 1)
        transpose_block(p, vTr, (vLa, vLb)[si & 1], sLo, sHi)
        for e in range(8):
            c = "0" if kk == 0 else v4(vDa + 4*e)
            p(f"v_mfma_f32_16x16x32_bf16 {v4(vDa+4*e)}, {v4(vHA+4*kk)}, {v4(vTr+4*e)}, {c}")
        if kk == 1:
            for b in range(4):
                g = vGr + 4*b
                sel4(p, g,   vDa + 0 + b, vDa + 8 + b,  vDa + 16 + b, vDa + 24 + b, sRg)
                sel4(p, g+2, vDa + 4 + b, vDa + 12 + b, vDa + 20 + b, vDa + 28 + b, sRg)
                p(f"v_mov_b32 v{g+1}, s{sT0}")
                p(f"v_mov_b32 v{g+3}, s{sT1}")
                p(f"s_add_u32 s{sB}, s{sA}, {(b*16 + 4*seg)*8192}")
                p(f"buffer_store_dwordx4 {v4(g)}, v{vFo}, s[{sWs}:{sWs+3}], s{sB} offen sc1")

def gen_reducer(p, cfg, L):
    sX, sWs, sOut, sGw = L["sX"], L["sWs"], L["sOut"], L["sGw"]
    sT0, sT1, sA, sB, sC2, sD, sCnt = (L[k] for k in ("sT0","sT1","sA","sB","sC2","sD","sCnt"))
    vL, vI, vG_, vTmp, vZero = L["vL"], L["vI"], L["vG_"], L["vTmp"], L["vZero"]
    ST = L["ST"]
    p.label("L_RED")
    p.reset_counters()
    srd(p, sOut, 36, 4096)
    srd(p, sGw, 34, 1024)
    sCs = 83
    p(f"s_lshr_b32 s{sCs}, s44, 1")
    vLo16 = 5
    p(f"v_lshlrev_b32 v{vLo16}, 4, v{vL}")
    p(f"s_lshl_b32 s{sA}, s46, 10")
    a = p(f"buffer_load_dwordx4 v[8:11], v{vLo16}, s[{sX}:{sX+3}], s{sA} offen")
    b = p(f"buffer_load_dwordx4 v[12:15], v{vLo16}, s[{sGw}:{sGw+3}], 0 offen")
    p.wait_vm(b)
    vz = 6
    p(f"v_mov_b32 v{vz}, 0")
    for k in range(4):
        p(f"v_lshlrev_b32 v16, 16, v{8+k}")
        p(f"v_lshlrev_b32 v17, 16, v{12+k}")
        p(f"v_fmac_f32 v{vz}, v16, v17")
        p(f"v_and_b32 v16, 0xffff0000, v{8+k}")
        p(f"v_and_b32 v17, 0xffff0000, v{12+k}")
        p(f"v_fmac_f32 v{vz}, v16, v17")
    for r in (1, 2, 4, 8):
        p(f"v_add_f32_dpp v{vz}, v{vz}, v{vz} row_ror:{r} {DPP}")
    rows_reduce(p, "v_add_f32", vz, 16)
    vGate, vOmg = 6, 7
    p(f"v_mul_f32 v{vz}, {lit(-math.log2(math.e))}, v{vz}")
    p(f"v_exp_f32 v{vz}, v{vz}")
    p(f"v_add_f32 v{vz}, 1.0, v{vz}")
    p(f"v_rcp_f32 v{vGate}, v{vz}")
    p(f"v_sub_f32 v{vOmg}, 1.0, v{vGate}")
    vBad, vT1, vT2 = 8, 9, 10
    vFg = 16
    p(f"s_lshl_b32 s{sA}, s46, 4")
    p(f"s_add_u32 s{sA}, s{sA}, s{sCs}")
    p(f"s_lshl_b32 s{sB}, s{sA}, 13")
    p(f"s_add_u32 s{sB}, s{sB}, {hex(FP_OFF)}")
    spin_begin(p, cfg, "L_FSPIN", sCnt)
    for j in range(7):
        p(f"s_add_u32 s{sC2}, s{sB}, {1024*j}")
        p(f"buffer_load_dwordx4 {v4(vFg+4*j)}, v{vLo16}, s[{sWs}:{sWs+3}], s{sC2} offen sc1")
    p("s_waitcnt vmcnt(0)")
    check_tags(p, vBad, vT1, vT2, [vFg + 4*j for j in range(7)], sT0, sT1)
    p(f"v_cmp_ne_u32 vcc, 0, v{vBad}")
    p("s_sleep 8")
    spin_end(p, cfg, "L_FSPIN", sCnt)
    p.reset_counters()
    vA0, vA1 = 12, 13
    p(f"v_mov_b32 v{vA0}, v{vFg}")
    p(f"v_mov_b32 v{vA1}, v{vFg+2}")
    for j in range(1, 7):
        p(f"v_add_f32 v{vA0}, v{vA0}, v{vFg+4*j}")
        p(f"v_add_f32 v{vA1}, v{vA1}, v{vFg+4*j+2}")
    p(f"v_mul_f32 v{vA0}, v{vOmg}, v{vA0}")
    p(f"v_mul_f32 v{vA1}, v{vOmg}, v{vA1}")
    p(f"s_lshl_b32 s{sB}, s{sA}, 14")
    p(f"s_add_u32 s{sB}, s{sB}, {hex(Y_OFF)}")
    p(f"s_lshl_b32 s{sD}, s46, 10")
    p(f"s_add_u32 s{sD}, s{sD}, {hex(ML_OFF)}")
    vPi = 14
    p(f"v_lshlrev_b32 v{vPi}, 2, v{vG_}")
    vOo = 15
    p(f"s_lshl_b32 s{sA}, s46, 10")
    p(f"s_lshl_b32 s{sC2}, s{sCs}, 6")
    p(f"s_add_u32 s{sA}, s{sA}, s{sC2}")
    p(f"v_lshlrev_b32 v{vOo}, 2, v{vL}")
    p(f"v_add_u32 v{vOo}, s{sA}, v{vOo}")
    p("s_barrier")
    stamp(p, cfg, ST+4)
    vML = 16
    vYg = 20
    spin_begin(p, cfg, "L_YSPIN", sCnt)
    p(f"buffer_load_dwordx4 {v4(vML)}, v{vLo16}, s[{sWs}:{sWs+3}], s{sD} offen sc1")
    for j in range(16):
        if j % 4 == 0: p(f"s_add_u32 s{sC2}, s{sB}, {4096*(j//4)}")
        p(f"buffer_load_dwordx4 {v4(vYg+4*j)}, v{vLo16}, s[{sWs}:{sWs+3}], s{sC2} offen offset:{1024*(j%4)} sc1")
    p("s_waitcnt vmcnt(0)")
    check_tags(p, vBad, vT1, vT2, [vML] + [vYg + 4*j for j in range(16)], sT0, sT1)
    p(f"v_cmp_ne_u32 vcc, 0, v{vBad}")
    spin_end(p, cfg, "L_YSPIN", sCnt)
    p.reset_counters()
    vM, vLs = vML, vML + 2
    vMp, vLp, vMx = 84, 85, 86
    p(f"v_mov_b32_dpp v{vMp}, v{vM} quad_perm:[1,0,3,2] {DPP}")
    p(f"v_mov_b32_dpp v{vLp}, v{vLs} quad_perm:[1,0,3,2] {DPP}")
    p(f"v_max_f32 v{vMx}, v{vM}, v{vMp}")
    p(f"v_sub_f32 v{vM}, v{vM}, v{vMx}")
    p(f"v_sub_f32 v{vMp}, v{vMp}, v{vMx}")
    p(f"v_exp_f32 v{vM}, v{vM}")
    p(f"v_exp_f32 v{vMp}, v{vMp}")
    p(f"v_mul_f32 v{vLs}, v{vM}, v{vLs}")
    p(f"v_fmac_f32 v{vLs}, v{vMp}, v{vLp}")
    p(f"v_rcp_f32 v{vLs}, v{vLs}")
    p(f"v_mul_f32 v{vM}, v{vM}, v{vGate}")
    p(f"v_mul_f32 v{vM}, v{vM}, v{vLs}")
    vW = 88
    ids = []
    for j in range(16):
        p(f"v_add_u32 v{vT1}, {16*j}, v{vPi}")
        ids.append(p(f"ds_bpermute_b32 v{vW+j}, v{vT1}, v{vM}"))
        if j == 7:
            p.wait_lg(ids[0])
    for j in range(16):
        p.wait_lg(ids[j])
        p(f"v_fmac_f32 v{vA0}, v{vW+j}, v{vYg+4*j}")
        p(f"v_fmac_f32 v{vA1}, v{vW+j}, v{vYg+4*j+2}")
    rows_reduce(p, "v_add_f32", vA0, vT1)
    rows_reduce(p, "v_add_f32", vA1, vT2)
    p(f"v_cvt_pk_bf16_f32 v{vA0}, v{vA0}, v{vA1}")
    p("s_mov_b64 exec, 0xffff")
    p(f"buffer_store_dword v{vA0}, v{vOo}, s[{sOut}:{sOut+3}], 0 offen")
    if cfg.stamps:
        p("s_mov_b64 exec, -1")
        stamp(p, cfg, ST+6)
        p("s_waitcnt lgkmcnt(0)")
        p("s_mul_i32 s76, s2, 128")
        p(f"s_add_u32 s76, s76, {hex(ST_OFF + 64)}")
        p("s_mov_b64 exec, 1")
        for k in range(4):
            p(f"v_mov_b32 v8, s{ST+2*k}"); p(f"v_mov_b32 v9, s{ST+2*k+1}")
            p(f"buffer_store_dwordx2 v[8:9], v{vZero}, s[{sWs}:{sWs+3}], s76 offen offset:{8*k}")
    p("s_endpgm")

def gen(cfg, path):
    p = Prog()
    p("s_cmp_ge_u32 s2, 256")
    p("s_cbranch_scc1 L_END")
    p("s_load_dwordx16 s[16:31], s[0:1], 0")
    p("s_load_dwordx8 s[32:39], s[0:1], 64")
    p("s_load_dwordx2 s[40:41], s[0:1], 96")
    p("v_lshrrev_b32 v1, 6, v0")
    p("v_readfirstlane_b32 s3, v1")
    p("v_and_b32 v0, 63, v0")
    p("s_and_b32 s42, s2, 7")
    p("s_lshr_b32 s43, s2, 3")
    p("s_lshr_b32 s44, s43, 3")
    p("s_lshl_b32 s45, s42, 2")
    p("s_add_u32 s44, s44, s45")
    p("s_and_b32 s45, s43, 7")
    p("s_lshr_b32 s46, s45, 1")
    p("s_and_b32 s47, s45, 1")
    p("s_cmp_eq_u32 s3, 4")
    p.check_pending = False
    p("s_cbranch_scc1 L_AUX")
    p.check_pending = True
    pend0 = dict(p.pend)
    gen_attention(p, cfg)
    p.reset_counters(); p.pend = pend0; p.smem_out = True
    gen_aux(p, cfg)
    p.label("L_END")
    p("s_endpgm")
    hdr = f"""; gated_mix__mha_block_cached__geglu_ffn__decode  (gfx950)
; One launch, 256 workgroups x (4 attention waves + 1 auxiliary wave).
; @launch grid=(256,1,1) block=(320,1,1) lds={LDS_BYTES}
.amdgcn_target "amdgcn-amd-amdhsa--gfx950"
.text
""" + kernel_header(KN) + "\n"
    txt = hdr + p.text() + kernel_desc(KN, 256, sgpr=102, accum=256) + "\n"
    txt = txt.rsplit(".text", 1)[0]
    open(path, "w").write(txt)
    return p

if __name__ == "__main__":
    import argparse
    ap = argparse.ArgumentParser()
    ap.add_argument("-o", default="main.s")
    ap.add_argument("--set", action="append", default=[])
    a = ap.parse_args()
    cfg = Cfg()
    for kv in a.set:
        k, v = kv.split("=", 1)
        old = getattr(cfg, k)
        setattr(cfg, k, v if isinstance(old, str) else (bool(int(v)) if isinstance(old, bool) else int(v)))
    p = gen(cfg, a.o)
    build_co(a.o, "main.co")
    n = sum(1 for i in p.ins if i.states)
    print("ok:", a.o, "instructions", n, "nop states inserted", p.nops_inserted)
```
